```python
import torch

def _softmax(x, axis=-1):
    return torch.softmax(x, dim=axis)
def _gelu(x):
    return torch.nn.functional.gelu(x, approximate="tanh")
def _silu(x):
    return torch.nn.functional.silu(x)
def _sigmoid(x):
    return torch.sigmoid(x)
def _layernorm(x, axis=-1, eps=1e-5):
    m = x.mean(dim=axis, keepdim=True)
    v = x.var(dim=axis, keepdim=True, unbiased=False)
    return (x - m) / torch.sqrt(v + eps)
def _scatter_add(tgt, idx, src, axis=0):
    return tgt.clone().index_add_(axis, idx, src)
def _segment_sum(src, seg, n):
    out = torch.zeros((n,) + src.shape[1:], dtype=src.dtype)
    return out.index_add_(0, seg, src)
def _pad(x, pw):
    flat = tuple(v for pair in reversed(pw) for v in pair)
    return torch.nn.functional.pad(x, flat)

kernel_name = 'concat_heads__grouped_kv_mqa__ssm_conv_s4d__prompt'

def setup_inputs():

    _w = (lambda a: (lambda t: t.to(torch.bfloat16) if t.is_floating_point() else t)(torch.as_tensor(a)))
    def _A_setup():
        B, S, D, H = 1, 2048, 512, 32
        Dh = D // H
        return {
            "x": _w((lambda *s: torch.randn(*s, dtype=torch.bfloat16) * 0.05)(B, S, D)),
            "wq": _w((lambda *s: torch.randn(*s, dtype=torch.bfloat16) * 0.8)(D, H * Dh)),
            "wk": _w((lambda *s: torch.randn(*s, dtype=torch.bfloat16) * 0.8)(D, Dh)),
            "wv": _w((lambda *s: torch.randn(*s, dtype=torch.bfloat16) * 0.05)(D, Dh)),
            "wo": _w((lambda *s: torch.randn(*s, dtype=torch.bfloat16) * 0.05)(H * Dh, D)),
        }
    _A_in = _A_setup()

    def _B_setup():
        Bsz, L, D, N = 1, 2048, 512, 128
        return {
            "u": _w((lambda *s: torch.randn(*s, dtype=torch.bfloat16) * 0.05)(Bsz, L, D)),
            "log_A_real": _w((lambda *s: torch.randn(*s, dtype=torch.bfloat16) * 6.4)(D, N) * 0.5),
            "A_imag": _w((lambda *s: torch.randn(*s, dtype=torch.bfloat16) * 0.05)(D, N) * 3.14),
            "C_real": _w((lambda *s: torch.randn(*s, dtype=torch.bfloat16) * 0.05)(D, N) / N ** 0.5),
            "C_imag": _w((lambda *s: torch.randn(*s, dtype=torch.bfloat16) * 0.05)(D, N) / N ** 0.5),
            "log_dt": _w((lambda *s: torch.randn(*s, dtype=torch.bfloat16) * 0.05)(D) * 0.5 - 4.0),
            "D_skip": _w((lambda *s: torch.randn(*s, dtype=torch.bfloat16) * 0.05)(D)),
        }
    _B_in = _B_setup()

    return {
        "A_x": _A_in["x"],
        "A_wq": _A_in["wq"],
        "A_wk": _A_in["wk"],
        "A_wv": _A_in["wv"],
        "A_wo": _A_in["wo"],
        "B_u": _B_in["u"],
        "B_log_A_real": _B_in["log_A_real"],
        "B_A_imag": _B_in["A_imag"],
        "B_C_real": _B_in["C_real"],
        "B_C_imag": _B_in["C_imag"],
        "B_log_dt": _B_in["log_dt"],
        "B_D_skip": _B_in["D_skip"],
    }

def reference(A_x, A_wq, A_wk, A_wv, A_wo, B_u, B_log_A_real, B_A_imag, B_C_real, B_C_imag, B_log_dt, B_D_skip):
    def _A_ref(x, wq, wk, wv, wo):
        B, S, D = x.shape
        H = 32
        Dh = D // H
        q = (lambda x, *d: x.permute(*d))((x @ wq).reshape(B, S, H, Dh), 0, 2, 1, 3)
        k = x @ wk
        v = x @ wv
        scores = torch.einsum("bhqd,bkd->bhqk", q, k) * (Dh ** -0.5)
        p = _softmax(scores, axis=-1)
        o = torch.einsum("bhqk,bkd->bhqd", p, v)
        return (lambda x, *d: x.permute(*d))(o, 0, 2, 1, 3).reshape(B, S, H * Dh) @ wo

    def _B_ref(u, log_A_real, A_imag, C_real, C_imag, log_dt, D_skip):
        L = u.shape[1]
        dt = torch.exp(log_dt)
        A = -torch.exp(log_A_real) + 1j * A_imag
        C = (C_real + 1j * C_imag) * dt[:, None]
        pos = (lambda x, dt: x.to(dt))(torch.arange(L), log_dt.dtype)
        P = torch.exp((A * dt[:, None])[:, :, None] * pos[None, None, :])
        K = 2.0 * torch.einsum("dn,dnl->dl", C, P).real
        L2 = 2 * L
        u_t = (lambda x, *d: x.permute(*d))(u, 0, 2, 1)
        Kf = (lambda x, *a, **k: torch.fft.rfft(x.float(), *a, **k))(K, L2)
        Uf = (lambda x, *a, **k: torch.fft.rfft(x.float(), *a, **k))(u_t, L2)
        y = (lambda x, *a, **k: torch.fft.irfft(x, *a, **k).to(torch.bfloat16))(Uf * Kf[None, :, :], L2)[:, :, :L]
        y = (lambda x, *d: x.permute(*d))(y, 0, 2, 1)
        return y + u * D_skip[None, None, :]

    a = _A_ref(A_x, A_wq, A_wk, A_wv, A_wo)
    b = _B_ref(B_u, B_log_A_real, B_A_imag, B_C_real, B_C_imag, B_log_dt, B_D_skip)
    return torch.concatenate([a, b], axis=-1)
```

```python
import re

TRANS = ("v_exp_", "v_log_", "v_rcp_", "v_rsq_", "v_sqrt_", "v_sin_", "v_cos_")

def _regs(tok):
    tok = tok.strip()
    tok = tok.lstrip("-").strip("|")
    if tok.startswith("neg(") or tok.startswith("abs("):
        tok = tok[4:-1]
    m = re.fullmatch(r"([vsa])(\d+)", tok)
    if m:
        return {(m.group(1), int(m.group(2)))}
    m = re.fullmatch(r"([vsa])\[(\d+):(\d+)\]", tok)
    if m:
        return {(m.group(1), i) for i in range(int(m.group(2)), int(m.group(3)) + 1)}
    if tok in ("vcc", "vcc_lo", "vcc_hi"):
        return {("vcc", 0)}
    if tok in ("exec", "exec_lo", "exec_hi"):
        return {("exec", 0)}
    if tok == "m0":
        return {("m0", 0)}
    return set()

class Ins:
    def __init__(self, text):
        self.text = text
        t = text.split(";")[0].strip()
        parts = t.split(None, 1)
        self.op = parts[0]
        rest = parts[1] if len(parts) > 1 else ""
        ops = [o.strip() for o in rest.split(",")] if rest else []
        self.mods = ""
        clean = []
        for i, o in enumerate(ops):
            if "[" in o and "]" not in o:
                pass
            w = o.split()
            clean.append(w[0] if w else "")
            if len(w) > 1:
                self.mods += " " + " ".join(w[1:])
        self.ops = clean
        op = self.op
        self.kind = None
        self.wr = set(); self.rd = set()
        self.srcc = set(); self.srcab = set(); self.passes = 0
        self.ws = 1
        R = [_regs(o) for o in clean]
        def union(l):
            s = set()
            for x in l: s |= x
            return s
        if op == "s_nop":
            self.kind = "nop"; self.ws = int(clean[0], 0) + 1
        elif op.startswith("v_mfma"):
            self.kind = "mfma"
            self.passes = 8 if "32x32x16" in op else 4
            assert "32x32x16" in op or "16x16x32" in op, op
            self.wr = R[0]; self.srcab = R[1] | R[2]; self.srcc = R[3]; self.rd = self.srcab | self.srcc
        elif op.startswith("v_"):
            self.kind = "valu"
            self.trans = op.startswith(TRANS)
            if op.startswith("v_cmpx"):
                self.wr = {("exec", 0)} | R[0]; self.rd = union(R[1:])
            elif op.startswith("v_cmp"):
                self.wr = R[0]; self.rd = union(R[1:])
            elif op.startswith(("v_add_co", "v_sub_co", "v_subrev_co", "v_addc_co", "v_subb_co")):
                self.wr = R[0] | R[1]; self.rd = union(R[2:])
            elif op.startswith("v_permlane") and "swap" in op:
                self.wr = R[0] | R[1]; self.rd = R[0] | R[1]
            elif op == "v_nop":
                pass
            else:
                self.wr = R[0]; self.rd = union(R[1:])
                if op.startswith(("v_fmac", "v_mac", "v_writelane")) or "UNUSED_PRESERVE" in text or "dpp" in op or "row_" in self.mods or "quad_perm" in self.mods:
                    self.rd |= R[0]
                if op.startswith("v_cndmask") and len(R) == 3:
                    self.rd |= {("vcc", 0)}
            self.dpp = ("dpp" in op) or ("row_" in self.mods) or ("quad_perm" in self.mods) or ("wave_" in self.mods)
            self.sdwa = ("sdwa" in op) or ("op_sel" in text)
        elif op.startswith("ds_"):
            self.kind = "ds"
            if op.startswith(("ds_read", "ds_bpermute", "ds_permute", "ds_swizzle")) or "_rtn" in op:
                self.wr = R[0]; self.rd = union(R[1:])
            else:
                self.rd = union(R)
        elif op.startswith(("buffer_", "global_")):
            self.kind = "vmem"
            self.lds = (" lds" in (" " + self.mods + " ")) or "_lds_" in op
            self.store = "store" in op or "atomic" in op
            if self.lds:
                self.rd = union(R) | {("m0", 0)}
            elif self.store:
                self.rd = union(R)
                self.wide = op.endswith(("x3", "x4"))
                self.data = R[0] if op.startswith("buffer_") else R[1]
            else:
                self.wr = R[0]; self.rd = union(R[1:])
        elif op.startswith(("s_load", "s_buffer_load", "s_memtime", "s_memrealtime")):
            self.kind = "smem"; self.wr = R[0] if R else set(); self.rd = union(R[1:])
        elif op.startswith(("s_branch", "s_cbranch")):
            self.kind = "branch"; self.target = clean[0]
        elif op in ("s_endpgm",):
            self.kind = "end"
        elif op.startswith("s_"):
            self.kind = "salu"
            if op.startswith(("s_cmp", "s_waitcnt", "s_barrier", "s_setprio", "s_bitcmp")):
                self.rd = union(R)
            else:
                self.wr = R[0] if R else set(); self.rd = union(R[1:])
                if "saveexec" in op:
                    self.wr |= {("exec", 0)}
        else:
            raise ValueError("unknown instruction: " + text)

def need(p, c):
    n = 0
    V = lambda s: {r for r in s if r[0] in "va" and len(r[0]) == 1}
    S = lambda s: {r for r in s if r[0] == "s" or r[0] == "vcc"}
    if p.kind == "valu":
        pv = V(p.wr); ps = S(p.wr); pe = ("exec", 0) in p.wr
        if c.kind == "mfma":
            if pv & c.rd: n = max(n, 2)
            if pe: n = max(n, 4)
        if c.kind == "valu":
            if ps & c.rd: n = max(n, 4 if c.op.startswith(("v_readlane", "v_writelane")) else 2)
            if pv & c.rd:
                if c.op.startswith(("v_readlane", "v_readfirstlane")): n = max(n, 1)
                if c.dpp or c.op.startswith("v_permlane"): n = max(n, 2)
                if p.trans and not c.trans: n = max(n, 1)
                if p.trans and c.trans: n = max(n, 1)
                if p.sdwa: n = max(n, 1)
            if p.sdwa and pv & c.wr: n = max(n, 1)
            if pe:
                if c.dpp: n = max(n, 5)
                if c.op.startswith(("v_readlane", "v_readfirstlane", "v_writelane", "v_permlane")): n = max(n, 4)
                if ("exec", 0) in c.rd: n = max(n, 2)
        if c.kind == "vmem" and ps & c.rd: n = max(n, 5)
        if c.kind in ("vmem", "ds") and p.trans and pv & c.rd: n = max(n, 1)
    if p.kind == "mfma":
        big = 12 if p.passes == 8 else 8
        if c.kind == "mfma":
            if p.wr & c.srcc:
                if not (p.wr == c.srcc and p.passes == c.passes): n = max(n, 10 if p.passes == 8 else 6)
            if p.wr & c.srcab: n = max(n, big)
            if p.wr & c.wr and not (p.wr & c.srcc): n = max(n, big)
        elif c.kind in ("valu", "vmem", "ds"):
            if p.wr & (c.rd | c.wr): n = max(n, big)
            if p.srcc & c.wr: n = max(n, 7 if p.passes == 8 else 3)
    if p.kind == "vmem" and getattr(p, "store", False) and not p.lds and p.wide:
        if p.data & c.wr: n = max(n, 2)
    if p.kind == "salu" and ("m0", 0) in p.wr:
        if (c.kind == "vmem" and c.lds) or (c.kind == "ds" and "addtid" in c.op): n = max(n, 1)
    return n

class Asm:
    def __init__(self):
        self.items = []
    def __call__(self, text):
        for line in text.split("\n"):
            line = line.strip()
            if not line: continue
            if line.startswith(";"):
                self.items.append(("raw", "    " + line)); continue
            self.items.append(Ins(line))
    def label(self, name): self.items.append(("label", name))
    def raw(self, text): self.items.append(("raw", text))
    def extend(self, other): self.items += other.items
    def pad(self):
        MAXW = 12
        total = 0
        start = 0
        while True:
            items = self.items
            srcs = {}
            for i, it in enumerate(items):
                if isinstance(it, Ins) and it.kind == "branch":
                    srcs.setdefault(it.target, []).append(i)
            found = None
            for i in range(start, len(items)):
                c = items[i]
                if not isinstance(c, Ins) or c.kind == "nop":
                    continue
                deficit = 0
                stack = [(i - 1, 0, False)]
                seen = set()
                while stack:
                    j, d, via = stack.pop()
                    while j >= 0 and d < MAXW:
                        if (j, d) in seen: break
                        seen.add((j, d))
                        p = items[j]
                        if isinstance(p, tuple):
                            if p[0] == "label":
                                for b in srcs.get(p[1], []):
                                    stack.append((b, d, True))
                            elif p[0] == "raw" and p[1].startswith(".kernel_start"):
                                break
                            j -= 1; continue
                        if not via and (p.kind == "end" or p.op == "s_branch"):
                            break
                        via = False
                        r = need(p, c)
                        if r > d: deficit = max(deficit, r - d)
                        d += p.ws
                        j -= 1
                if deficit:
                    found = (i, deficit); break
            if not found: break
            i, deficit = found
            items.insert(i, Ins(f"s_nop {deficit - 1}"))
            total += 1
            start = i + 1
        return total
    def text(self):
        o = []
        for it in self.items:
            if isinstance(it, Ins): o.append("    " + it.text)
            elif it[0] == "label": o.append(it[1] + ":")
            else:
                if not it[1].startswith(".kernel_start"): o.append(it[1])
        return "\n".join(o) + "\n"
```

```python
import struct
QF, KF, VF, WOF, KG = 0x0, 0x200000, 0x210000, 0x220000, 0x2A0000
PROF = 0x4A0000
WS_SIZE = 0x4A0000 + 0x80000
def fhex(x):
    return "0x%08x" % struct.unpack("<I", struct.pack("<f", x))[0]
def prof_dump(a, kern, nw, wid, srd="s[44:47]"):
    a("s_memtime s[98:99]")
    a("s_waitcnt lgkmcnt(0)")
    a("s_mov_b64 exec, -1")
    a("v_mov_b32 v1, 0")
    for i in range(10):
        a(f"v_writelane_b32 v1, s{80+2*i}, {i}")
    a("s_lshl_b32 s78, s2, 10")
    a(f"s_lshl_b32 s79, {wid}, 6")
    a("s_add_u32 s78, s78, s79")
    a(f"s_add_u32 s78, s78, 0x{PROF + kern*0x40000:x}")
    a("v_mbcnt_lo_u32_b32 v2, -1, 0")
    a("v_mbcnt_hi_u32_b32 v2, -1, v2")
    a("v_lshlrev_b32 v2, 2, v2")
    a("s_mov_b64 exec, 0xffff")
    a(f"buffer_store_dword v1, v2, {srd}, s78 offen")
```

```python
from asmb import Asm
from common import *

XB, WB, KVB, ST = 0, 65536, 131072, 147456
K1_LDS = 163840

def gen_k1(a, prof=False):
    a.raw(".kernel_start")
    a("s_cmp_ge_u32 s2, 256")
    a("s_cbranch_scc1 K1_END")
    a("s_load_dwordx16 s[16:31], s[0:1], 0")
    a("s_load_dwordx8 s[32:39], s[0:1], 64")
    a("s_load_dwordx2 s[44:45], s[0:1], 112")
    if prof: a("s_memtime s[80:81]")
    a("v_lshrrev_b32 v1, 6, v0")
    a("v_and_b32 v0, 63, v0")
    a("v_readfirstlane_b32 s3, v1")
    a("s_and_b32 s4, s2, 7")
    a("s_lshr_b32 s5, s2, 3")
    a("s_lshr_b32 s6, s5, 3")
    a("s_lshl_b32 s7, s4, 2")
    a("s_add_u32 s6, s6, s7")
    a("s_and_b32 s7, s5, 7")
    a("s_lshl_b32 s8, s4, 5")
    a("s_add_u32 s8, s8, s5")
    a("s_mov_b32 s46, 0x%x" % WS_SIZE)
    a("s_mov_b32 s47, 0x00020000")
    a("s_cmp_lt_u32 s3, 4")
    a("s_cbranch_scc1 K1_S")
    a("s_sub_u32 s9, s3, 4")
    a("v_lshrrev_b32 v11, 4, v0")
    a("v_and_b32 v12, 15, v0")
    for i in range(4):
        a(f"v_add_u32 v13, {4*i}, v11")
        a(f"v_xor_b32 v13, v13, v12")
        a(f"v_lshlrev_b32 v13, 4, v13")
        a(f"v_lshl_add_u32 v13, v11, 10, v13")
        a(f"v_add_u32 v{2+i}, {3072*i}, v13")
    a("v_and_b32 v13, 1, v11")
    a("v_lshlrev_b32 v13, 2, v13")
    a("v_and_b32 v14, 7, v0")
    a("v_xor_b32 v13, v13, v14")
    a("v_lshlrev_b32 v13, 4, v13")
    a("v_lshrrev_b32 v14, 3, v0")
    a("v_lshl_add_u32 v6, v14, 10, v13")
    for i in range(1, 4):
        a(f"v_add_u32 v{6+i}, {7168*i}, v6")
    a("v_and_b32 v13, 0x27, v0")
    a("v_and_b32 v14, 8, v0")
    a("v_lshl_add_u32 v13, v14, 1, v13")
    a("v_and_b32 v14, 16, v0")
    a("v_lshrrev_b32 v14, 1, v14")
    a("v_add_lshl_u32 v10, v13, v14, 4")
    a("s_lshl_b32 s10, s6, 16")
    a("s_lshl_b32 s11, s9, 14")
    a("s_add_u32 s10, s10, s11")
    a("s_lshl_b32 s11, s9, 15")
    a("s_lshl_b32 s12, s7, 7")
    a("s_add_u32 s11, s11, s12")
    a("s_lshl_b32 s12, s9, 10")
    a("s_lshl_b32 s13, s9, 12")
    a("s_mov_b32 s50, 0x200000")
    a("s_mov_b32 s51, 0x00020000")
    a("s_mov_b32 s54, 0x80000")
    a("s_mov_b32 s55, 0x00020000")
    a("s_mov_b32 s58, 0x4000")
    a("s_mov_b32 s59, 0x00020000")
    a("s_bitcmp1_b32 s7, 0")
    a("s_waitcnt lgkmcnt(0)")
    a("s_mov_b64 s[48:49], s[16:17]")
    a("s_mov_b64 s[52:53], s[18:19]")
    a("s_cselect_b64 s[56:57], s[22:23], s[20:21]")
    for kc in range(4):
        a(f"s_add_u32 m0, s13, {XB + kc*16384}")
        for i in range(4):
            a(f"buffer_load_dwordx4 v{2+i}, s[48:51], s10 offen offset:{1024*i} lds")
        a(f"s_add_u32 m0, s13, {WB + kc*16384}")
        for i in range(4):
            a(f"buffer_load_dwordx4 v{6+i}, s[52:55], s11 offen offset:{1024*i} lds")
        if kc < 3:
            a("s_add_u32 s10, s10, 256")
            a("s_add_u32 s11, s11, 0x20000")
    for kc in range(4):
        a(f"s_add_u32 m0, s12, {KVB}")
        a(f"buffer_load_dwordx4 v10, s[56:59], s12 offen lds")
        if kc < 3: a("s_add_u32 s12, s12, 4096")
    a("s_and_b32 s14, s9, 1")
    a("s_lshr_b32 s15, s9, 1")
    a("v_and_b32 v13, 31, v0")
    a("s_lshl_b32 s60, s14, 5")
    a("v_add_u32 v13, s60, v13")
    a("v_lshrrev_b32 v14, 5, v0")
    a("v_xor_b32 v15, v14, v12")
    a("v_lshlrev_b32 v15, 4, v15")
    a("v_lshl_add_u32 v2, v13, 8, v15")
    for s8 in range(1, 8):
        a(f"v_xor_b32 v{2+s8}, {32*s8}, v2")
    a("v_bfe_u32 v15, v0, 2, 2")
    a("v_lshl_add_u32 v16, v14, 3, v15")
    a("v_lshlrev_b32 v16, 7, v16")
    a("v_lshrrev_b32 v15, 1, v15")
    a("v_xor_b32 v15, s15, v15")
    a("v_lshl_add_u32 v16, v15, 6, v16")
    a("v_and_b32 v15, 1, v11")
    a("v_lshl_add_u32 v16, v15, 5, v16")
    a("v_and_b32 v15, 1, v0")
    a("v_lshl_add_u32 v16, v15, 4, v16")
    a("v_and_b32 v15, 2, v0")
    a("v_lshl_add_u32 v16, v15, 2, v16")
    a(f"v_add_u32 v10, {WB}, v16")
    a("v_lshrrev_b32 v15, 3, v13")
    a("v_lshlrev_b32 v15, 13, v15")
    a("v_lshl_add_u32 v15, v14, 9, v15")
    a("v_and_b32 v16, 7, v0")
    a("v_lshl_add_u32 v11, v16, 4, v15")
    a("s_lshl_b32 s60, s6, 16")
    a("s_lshl_b32 s61, s7, 10")
    a("s_add_u32 s60, s60, s61")
    a("s_lshl_b32 s61, s15, 8")
    a("s_add_u32 s60, s60, s61")
    ACC = 16
    FR = 32
    def reads(s):
        f = FR + 8 * (s % 8)
        a(f"ds_read_b64_tr_b16 v[{f}:{f+1}], v10 offset:{s*2048}")
        a(f"ds_read_b64_tr_b16 v[{f+2}:{f+3}], v10 offset:{s*2048+512}")
        a(f"ds_read_b128 v[{f+4}:{f+7}], v{2 + s % 8} offset:{XB + (s//8)*16384}")
    def half(s0, s1):
        D = 4
        for s in range(s0, s0 + D): reads(s)
        for s in range(s0, s1):
            rem = min(s1 - 1 - s, D - 1)
            a(f"s_waitcnt lgkmcnt({3*rem})")
            f = FR + 8 * (s % 8)
            c = "0" if s == 0 else f"v[{ACC}:{ACC+15}]"
            a(f"v_mfma_f32_32x32x16_bf16 v[{ACC}:{ACC+15}], v[{f}:{f+3}], v[{f+4}:{f+7}], {c}")
            if s + D < s1: reads(s + D)
    a("s_waitcnt vmcnt(20)")
    if prof: a("s_memtime s[82:83]")
    a("s_barrier")
    if prof: a("s_memtime s[84:85]"); a("s_waitcnt lgkmcnt(0)")
    half(0, 16)
    a("s_waitcnt vmcnt(0)")
    if prof: a("s_memtime s[86:87]")
    a("s_barrier")
    if prof: a("s_memtime s[88:89]"); a("s_waitcnt lgkmcnt(0)")
    half(16, 32)
    for j in range(8):
        a(f"v_cvt_pk_bf16_f32 v{FR+j}, v{ACC+2*j}, v{ACC+2*j+1}")
    a(f"buffer_store_dwordx4 v[{FR}:{FR+3}], v11, s[44:47], s60 offen")
    a(f"buffer_store_dwordx4 v[{FR+4}:{FR+7}], v11, s[44:47], s60 offen offset:128")
    if prof: prof_dump(a, 0, 8, "s3")
    a("s_endpgm")

    a.label("K1_S")
    a("s_lshr_b32 s9, s3, 1")
    a("s_and_b32 s10, s3, 1")
    a("s_lshl_b32 s11, s8, 1")
    a("s_add_u32 s11, s11, s9")
    a("s_lshl_b32 s12, s11, 8")
    a("s_lshl_b32 s13, s10, 7")
    a("s_add_u32 s12, s12, s13")
    a("s_lshl_b32 s13, s8, 2")
    a("v_lshlrev_b32 v1, 1, v0")
    for r in (50, 54, 58, 62):
        a(f"s_mov_b32 s{r}, 0x20000")
        a(f"s_mov_b32 s{r+1}, 0x00020000")
    a("s_mov_b32 s66, 0x80000")
    a("s_mov_b32 s67, 0x00020000")
    a("s_waitcnt lgkmcnt(0)")
    a("s_load_dword s14, s[36:37], s13")
    a("s_load_dword s15, s[38:39], s13")
    a("s_mov_b64 s[48:49], s[28:29]")
    a("s_mov_b64 s[52:53], s[30:31]")
    a("s_mov_b64 s[56:57], s[32:33]")
    a("s_mov_b64 s[60:61], s[34:35]")
    a("s_mov_b64 s[64:65], s[24:25]")
    a("buffer_load_ushort v2, v1, s[48:51], s12 offen")
    a("buffer_load_ushort v3, v1, s[52:55], s12 offen")
    a("buffer_load_ushort v4, v1, s[56:59], s12 offen")
    a("buffer_load_ushort v5, v1, s[60:63], s12 offen")
    WO = 200
    a("s_cmp_lg_u32 s3, 0")
    a("s_cbranch_scc1 K1_S_NOWO")
    a("s_lshr_b32 s68, s2, 5")
    a("s_lshl_b32 s68, s68, 3")
    a("s_and_b32 s69, s2, 7")
    a("s_add_u32 s68, s68, s69")
    a("s_lshl_b32 s68, s68, 13")
    a("s_bfe_u32 s69, s2, 0x20003")
    a("s_lshl_b32 s69, s69, 8")
    a("s_add_u32 s68, s68, s69")
    a("s_add_u32 s69, s68, 4096")
    a("v_lshlrev_b32 v6, 2, v0")
    for e in range(8):
        so = "s68" if e < 4 else "s69"
        a(f"buffer_load_dword v{WO+e}, v6, s[64:67], {so} offen offset:{1024*(e%4)}")
    a.label("K1_S_NOWO")
    a("s_lshl_b32 s70, s3, 12")
    a(f"s_add_u32 s70, s70, {ST}")
    a("v_lshrrev_b32 v6, 2, v0")
    a("v_and_b32 v7, 7, v6")
    a("v_lshlrev_b32 v7, 4, v7")
    a("v_lshl_add_u32 v7, v6, 8, v7")
    a("v_and_b32 v6, 3, v0")
    a("v_lshl_add_u32 v7, v6, 2, v7")
    a("v_add_u32 v8, s70, v7")
    for r in range(1, 8):
        a(f"v_xor_b32 v{8+r}, {16*r}, v8")
    a("v_lshrrev_b32 v6, 4, v0")
    a("v_and_b32 v7, 15, v0")
    a("v_xor_b32 v7, v7, v6")
    a("v_lshlrev_b32 v7, 4, v7")
    a("v_lshl_add_u32 v7, v6, 8, v7")
    a("v_add_u32 v16, s70, v7")
    a("v_xor_b32 v17, 64, v16")
    a("s_mov_b32 s71, 0x3fb8aa3b")
    a("s_waitcnt lgkmcnt(0)")
    a("s_cmp_eq_u32 s9, 0")
    a("s_cselect_b32 s72, 16, 0")
    a("s_lshl_b32 s14, s14, s72")
    a("s_and_b32 s14, s14, 0xffff0000")
    a("s_lshl_b32 s15, s15, s72")
    a("s_and_b32 s15, s15, 0xffff0000")
    a("v_mov_b32 v6, s14")
    a("v_mul_f32 v6, s71, v6")
    a("v_exp_f32 v6, v6")
    a("v_cvt_pk_bf16_f32 v6, v6, v6")
    a("v_and_b32 v6, 0xffff0000, v6")
    a("s_cmp_lg_u32 s3, 0")
    a("s_cbranch_scc1 K1_S_W0")
    a("s_waitcnt vmcnt(8)")
    a("s_branch K1_S_W1")
    a.label("K1_S_W0")
    a("s_waitcnt vmcnt(0)")
    a.label("K1_S_W1")
    if prof: a("s_memtime s[82:83]")
    for r in (2, 3, 4, 5):
        a(f"v_lshlrev_b32 v{r}, 16, v{r}")
    a("v_mul_f32 v2, s71, v2")
    a("v_exp_f32 v2, v2")
    a("v_mul_f32 v3, v3, v6")
    a("v_mul_f32 v4, v4, v6")
    a("v_mul_f32 v5, v5, v6")
    a("v_cvt_pk_bf16_f32 v2, v2, v2")
    a("v_and_b32 v2, 0xffff0000, v2")
    a("v_mul_f32 v2, v2, v6")
    a("v_mul_f32 v3, 0.15915494, v3")
    a("v_mul_f32 v2, s71, v2")
    a("v_add_f32 v4, v4, v4")
    a("v_add_f32 v5, v5, v5")
    M = {1: 18, 8: 20, 256: 22, 2: 24, 4: 26}
    T = 28
    for j, p in enumerate((1, 8, 256)):
        t = T + 3 * j
        a(f"v_mul_f32 v{t}, {fhex(-float(p))}, v2")
        a(f"v_mul_f32 v{t+1}, {fhex(float(p))}, v3")
    for j, p in enumerate((1, 8, 256)):
        t = T + 3 * j
        a(f"v_exp_f32 v{t}, v{t}")
        a(f"v_fract_f32 v{t+1}, v{t+1}")
    for j, p in enumerate((1, 8, 256)):
        t = T + 3 * j
        a(f"v_cos_f32 v{t+2}, v{t+1}")
        a(f"v_sin_f32 v{t+1}, v{t+1}")
    for j, p in enumerate((1, 8, 256)):
        t = T + 3 * j
        a(f"v_mul_f32 v{M[p]}, v{t}, v{t+2}")
        a(f"v_mul_f32 v{M[p]+1}, v{t}, v{t+1}")
    def cmul(d, x, m, t):
        return [f"v_mul_f32 v{t}, v{x}, v{m}", f"v_mul_f32 v{t+1}, v{x}, v{m+1}",
                f"v_fma_f32 v{t}, -v{x+1}, v{m+1}, v{t}" if d == x else f"v_fma_f32 v{d}, -v{x+1}, v{m+1}, v{t}",
                f"v_fma_f32 v{d+1}, v{x+1}, v{m}, v{t+1}"] + ([f"v_mov_b32 v{d}, v{t}"] if d == x else [])
    for l in cmul(M[2], M[1], M[1], T): a(l)
    for l in cmul(M[4], M[2], M[2], T): a(l)
    PX, PY = 64, 96
    xops = []
    a(f"v_mov_b32 v{PX}, 0x3f80")
    xops.append([f"v_cvt_pk_bf16_f32 v{PX+1}, v{M[8]}, v{M[8]+1}"])
    cur = M[8]
    for j in range(2, 32):
        d = 40 + 2 * (j % 2)
        xops.append(cmul(d, cur, M[8], T) + [f"v_cvt_pk_bf16_f32 v{PX+j}, v{d}, v{d+1}"])
        cur = d
    yslot = {}
    yops = []
    def ynew(beta):
        yslot[beta] = PY + len(yslot); return yslot[beta]
    yops.append([f"v_cvt_pk_bf16_f32 v{ynew(0)}, v4, -v5"])
    tog = [0, 0]
    def ystep(src, m, beta, lvl):
        d = (44 if lvl == 0 else 48) + 2 * tog[lvl]; tog[lvl] ^= 1
        yops.append(cmul(d, src, M[m], T + 2) + [f"v_cvt_pk_bf16_f32 v{ynew(beta)}, v{d}, -v{d+1}"])
        return d
    c = 4
    for b in range(1, 8): c = ystep(c, 1, b, 1)
    base = 4
    for bi, (step, cnt) in enumerate([(2, 4), (4, 2), (4, 2), (8, 1), (8, 1), (8, 1), (8, 1)]):
        b0 = 256 * (bi + 1)
        base = ystep(base, 256, b0, 0)
        c = base
        for j in range(1, cnt + 1): c = ystep(c, step, b0 + step * j, 1)
    rows = [[0, 1, 2, 3, 4, 5, 6, 7, 256, 256, 258, 260, 260, 260, 262, 264],
            [512, 516, 520, 520, 768, 772, 776, 776, 1024, 1032, 1280, 1288, 1536, 1544, 1792, 1800]]
    FB, FA = 128, 160
    AC = 192 - 0
    AC = 208
    def stage(regs, dst):
        for r in range(8):
            a(f"ds_write2_b32 v{8+r}, v{regs[r]}, v{regs[r+8]} offset1:32")
        for ks in range(4):
            a(f"ds_read_b128 v[{dst+4*ks}:{dst+4*ks+3}], v{16 + ks % 2} offset:{1024*ks}")
    def inter(xs, ys):
        n = max(len(xs), len(ys))
        for i in range(n):
            x = xs[i] if i < len(xs) else []
            y = ys[i] if i < len(ys) else []
            for k in range(max(len(x), len(y))):
                if k < len(x): a(x[k])
                if k < len(y): a(y[k])
    inter(xops[:13], yops[:13])
    stage([yslot[b] for b in rows[0]], FA)
    inter(xops[13:15], yops[13:15])
    stage([PX + j for j in range(16)], FB)
    if prof: a("s_memtime s[84:85]")
    a("s_barrier")
    if prof: a("s_memtime s[86:87]")
    a("s_cmp_lg_u32 s3, 0")
    a("s_cbranch_scc1 K1_S_NOWO2")
    a("s_waitcnt vmcnt(0)")
    a("s_mov_b32 s68, 0x05040100")
    a("s_mov_b32 s69, 0x07060302")
    for j in range(4):
        a(f"v_perm_b32 v{224+j}, v{WO+2*j+1}, v{WO+2*j}, s68")
        a(f"v_perm_b32 v{228+j}, v{WO+2*j+1}, v{WO+2*j}, s69")
    a("v_bfe_u32 v232, v0, 1, 3")
    a("v_lshlrev_b32 v232, 10, v232")
    a("v_lshrrev_b32 v233, 4, v0")
    a("v_lshl_add_u32 v232, v233, 6, v232")
    a("v_and_b32 v233, 1, v0")
    a("v_lshl_add_u32 v232, v233, 5, v232")
    a("s_lshr_b32 s68, s2, 2")
    a("s_lshl_b32 s68, s68, 13")
    a("s_and_b32 s69, s2, 3")
    a("s_lshl_b32 s69, s69, 8")
    a("s_add_u32 s68, s68, s69")
    a(f"s_add_u32 s68, s68, 0x{WOF:x}")
    a("buffer_store_dwordx4 v[224:227], v232, s[44:47], s68 offen")
    a("buffer_store_dwordx4 v[228:231], v232, s[44:47], s68 offen offset:16")
    a.label("K1_S_NOWO2")
    inter(xops[15:27], yops[15:])
    stage([yslot[b] for b in rows[1]], FA + 16)
    def mm(mt, nt):
        for ks in range(4):
            d = AC + 8 * mt + 4 * nt
            c = "0" if ks == 0 else f"v[{d}:{d+3}]"
            fa = FA + 16 * mt + 4 * ks; fb = FB + 16 * nt + 4 * ks
            a(f"v_mfma_f32_16x16x32_bf16 v[{d}:{d+3}], v[{fa}:{fa+3}], v[{fb}:{fb+3}], {c}")
    a("s_waitcnt lgkmcnt(12)")
    mm(0, 0)
    inter(xops[27:], [])
    stage([PX + 16 + j for j in range(16)], FB + 16)
    a("s_waitcnt lgkmcnt(12)")
    mm(1, 0)
    a("v_lshlrev_b32 v6, 4, v0")
    a("v_add_u32 v6, s70, v6")
    a("v_xor_b32 v7, 4096, v6")
    a("s_waitcnt lgkmcnt(0)")
    a("s_cmp_eq_u32 s10, 0")
    a("s_cbranch_scc0 K1_S_NH1")
    mm(1, 1)
    mm(0, 1)
    a(f"ds_write_b128 v6, v[{AC+8}:{AC+11}]")
    a(f"ds_write_b128 v6, v[{AC+12}:{AC+15}] offset:1024")
    a("v_lshrrev_b32 v8, 5, v0")
    a("v_lshlrev_b32 v8, 8, v8")
    a("v_and_b32 v9, 15, v0")
    a("v_lshl_add_u32 v8, v9, 3, v8")
    a("v_bfe_u32 v9, v0, 4, 1")
    a("v_lshl_add_u32 v8, v9, 2, v8")
    a("v_xor_b32 v8, 28, v8")
    a("v_lshlrev_b32 v8, 1, v8")
    a("v_cmp_eq_u32 vcc, 0, v0")
    a("v_mov_b32 v9, s15")
    a("v_cndmask_b32 v9, 0, v9, vcc")
    a("s_lshl_b32 s68, s11, 12")
    a(f"s_add_u32 s68, s68, 0x{KG:x}")
    a("s_waitcnt lgkmcnt(0)")
    if prof: a("s_memtime s[88:89]")
    a("s_barrier")
    if prof: a("s_memtime s[90:91]")
    a(f"ds_read_b128 v[20:23], v7")
    a(f"ds_read_b128 v[24:27], v7 offset:1024")
    a(f"v_add_f32 v{AC}, v{AC}, v9")
    a("s_waitcnt lgkmcnt(0)")
    for r in range(8):
        a(f"v_add_f32 v{20+r}, v{20+r}, v{AC+r}")
    for nt in range(2):
        b = 20 + 4 * nt
        a(f"v_cvt_pk_bf16_f32 v{28+2*nt}, v{b+3}, v{b+2}")
        a(f"v_cvt_pk_bf16_f32 v{29+2*nt}, v{b+1}, v{b}")
    a("buffer_store_dwordx2 v[28:29], v8, s[44:47], s68 offen")
    a("buffer_store_dwordx2 v[30:31], v8, s[44:47], s68 offen offset:256")
    a("s_cmp_lg_u32 s3, 2")
    a("s_cbranch_scc1 K1_S_DONE")
    a("s_lshr_b32 s68, s7, 1")
    a("s_lshl_b32 s69, s68, 12")
    a("v_and_b32 v8, 15, v0")
    a("v_lshrrev_b32 v9, 4, v0")
    a("v_xor_b32 v10, v8, v9")
    a("v_lshlrev_b32 v10, 4, v10")
    a("v_lshl_add_u32 v10, v8, 8, v10")
    a("v_add_u32 v10, s69, v10")
    for j in range(1, 4):
        a(f"v_xor_b32 v{10+j}, {64*j}, v10")
    a("v_lshrrev_b32 v14, 5, v0")
    a("v_lshlrev_b32 v14, 9, v14")
    a("v_and_b32 v15, 31, v0")
    a("v_lshl_add_u32 v14, v15, 3, v14")
    a(f"v_add_u32 v14, {KVB}, v14")
    KF_ = 32
    def kread(s):
        f = KF_ + 8 * s
        a(f"ds_read_b64_tr_b16 v[{f}:{f+1}], v14 offset:{s*1024}")
        a(f"ds_read_b64_tr_b16 v[{f+2}:{f+3}], v14 offset:{s*1024+256}")
        a(f"ds_read_b128 v[{f+4}:{f+7}], v{10 + s % 4} offset:{XB + (s//4)*16384}")
    a("s_bitcmp1_b32 s7, 0")
    a("s_cbranch_scc1 K1_S_V")
    def kvloop(isv):
        D = 5
        for s in range(D): kread(s)
        for s in range(16):
            rem = min(15 - s, D - 1)
            a(f"s_waitcnt lgkmcnt({3*rem})")
            f = KF_ + 8 * s
            d = 20 + 4 * (s % 2)
            c = "0" if s < 2 else f"v[{d}:{d+3}]"
            A, B = (f"v[{f+4}:{f+7}]", f"v[{f}:{f+3}]") if isv else (f"v[{f}:{f+3}]", f"v[{f+4}:{f+7}]")
            a(f"v_mfma_f32_16x16x32_bf16 v[{d}:{d+3}], {A}, {B}, {c}")
            if s + D < 16: kread(s + D)
    kvloop(False)
    a("v_and_b32 v10, 3, v0")
    a("v_and_b32 v11, 4, v0")
    a("v_lshl_add_u32 v10, v11, 1, v10")
    a("v_and_b32 v11, 8, v0")
    a("v_lshrrev_b32 v11, 1, v11")
    a("v_add_lshl_u32 v10, v10, v11, 4")
    a("v_lshrrev_b32 v11, 5, v0")
    a("v_lshl_add_u32 v10, v11, 9, v10")
    a("v_bfe_u32 v11, v0, 4, 1")
    a("v_lshl_add_u32 v10, v11, 3, v10")
    a("s_lshl_b32 s69, s6, 11")
    a("s_lshr_b32 s72, s68, 1")
    a("s_lshl_b32 s72, s72, 10")
    a("s_add_u32 s69, s69, s72")
    a("s_and_b32 s72, s68, 1")
    a("s_lshl_b32 s72, s72, 8")
    a("s_add_u32 s69, s69, s72")
    a(f"s_add_u32 s69, s69, 0x{KF:x}")
    a(f"s_mov_b32 s72, {fhex(0.25 * 1.4426950408889634)}")
    for r in range(4):
        a(f"v_add_f32 v{20+r}, v{20+r}, v{24+r}")
    for r in range(4):
        a(f"v_mul_f32 v{20+r}, s72, v{20+r}")
    a("v_cvt_pk_bf16_f32 v28, v20, v21")
    a("v_cvt_pk_bf16_f32 v29, v22, v23")
    a("buffer_store_dwordx2 v[28:29], v10, s[44:47], s69 offen")
    a("s_branch K1_S_DONE")
    a.label("K1_S_V")
    kvloop(True)
    a("v_and_b32 v10, 15, v0")
    a("v_lshlrev_b32 v10, 4, v10")
    a("v_lshrrev_b32 v11, 5, v0")
    a("v_lshl_add_u32 v10, v11, 8, v10")
    a("v_bfe_u32 v11, v0, 4, 1")
    a("v_lshl_add_u32 v10, v11, 3, v10")
    a("s_lshl_b32 s69, s6, 2")
    a("s_add_u32 s69, s69, s68")
    a("s_lshl_b32 s69, s69, 9")
    a(f"s_add_u32 s69, s69, 0x{VF:x}")
    for r in range(4):
        a(f"v_add_f32 v{20+r}, v{20+r}, v{24+r}")
    a("v_cvt_pk_bf16_f32 v28, v20, v21")
    a("v_cvt_pk_bf16_f32 v29, v22, v23")
    a("buffer_store_dwordx2 v[28:29], v10, s[44:47], s69 offen")
    a("s_branch K1_S_DONE")
    a.label("K1_S_NH1")
    mm(0, 1)
    mm(1, 1)
    a(f"ds_write_b128 v6, v[{AC}:{AC+3}]")
    a(f"ds_write_b128 v6, v[{AC+4}:{AC+7}] offset:1024")
    a("v_lshrrev_b32 v8, 4, v0")
    a("v_cmp_eq_u32 vcc, 3, v8")
    a("v_addc_co_u32 v8, vcc, 2, v8, vcc")
    a("v_lshlrev_b32 v8, 8, v8")
    a("v_and_b32 v9, 15, v0")
    a("v_lshl_add_u32 v8, v9, 3, v8")
    a("v_xor_b32 v8, 24, v8")
    a("v_lshlrev_b32 v8, 1, v8")
    a("s_mov_b32 s72, 0xffffffff")
    a("s_mov_b32 s73, 0")
    a("s_mov_b32 s74, 0xffffffff")
    a("s_mov_b32 s75, 0xaaaaaaaa")
    a("s_lshl_b32 s68, s11, 12")
    a(f"s_add_u32 s68, s68, 0x{KG:x}")
    a("s_waitcnt lgkmcnt(0)")
    if prof: a("s_memtime s[88:89]")
    a("s_barrier")
    if prof: a("s_memtime s[90:91]")
    a(f"ds_read_b128 v[20:23], v7")
    a(f"ds_read_b128 v[24:27], v7 offset:1024")
    a("s_waitcnt lgkmcnt(0)")
    for r in range(8):
        a(f"v_add_f32 v{20+r}, v{20+r}, v{AC+8+r}")
    for nt in range(2):
        b = 20 + 4 * nt; o = 32 + 8 * nt; t = 48 + 4 * nt
        a(f"v_cndmask_b32 v{t}, v{b+1}, v{b+2}, s[72:73]")
        a(f"v_cndmask_b32 v{t+1}, v{b}, v{b+1}, s[74:75]")
        a(f"v_cndmask_b32 v{t+2}, v{b}, v{b+1}, s[72:73]")
        a(f"v_cndmask_b32 v{t+3}, v{b+2}, v{b+3}, s[74:75]")
        a(f"v_cvt_pk_bf16_f32 v{o}, v{t}, v{t}")
        a(f"v_cvt_pk_bf16_f32 v{o+1}, v{b+1}, v{t+1}")
        a(f"v_cvt_pk_bf16_f32 v{o+2}, v{t+2}, v{b}")
        a(f"v_cvt_pk_bf16_f32 v{o+3}, v{b}, v{b}")
        a(f"buffer_store_dwordx4 v[{o}:{o+3}], v8, s[44:47], s68 offen offset:{256*nt}")
        a(f"v_cvt_pk_bf16_f32 v{o+4}, v{b+3}, v{b+3}")
        a(f"v_cvt_pk_bf16_f32 v{o+5}, v{b+3}, v{t+3}")
        a(f"v_cvt_pk_bf16_f32 v{o+6}, v{b+2}, v{b+2}")
        a(f"v_cvt_pk_bf16_f32 v{o+7}, v{b+2}, v{b+2}")
    a("s_mov_b32 exec_lo, 0")
    for nt in range(2):
        o = 32 + 8 * nt
        a(f"buffer_store_dwordx4 v[{o+4}:{o+7}], v8, s[44:47], s68 offen offset:{512 + 256*nt}")
    a("s_mov_b32 exec_lo, -1")
    a.label("K1_S_DONE")
    if prof: prof_dump(a, 0, 8, "s3")
    a.label("K1_END")
    a("s_endpgm")
    return 240
```

```python
from asmb import Asm
from common import *

PB0, QL, PB1, OB, FL = 0, 24576, 32768, 57344, 59392
UC, UCS, UCC = 59400, 4256, 17024
KB, KBC = 93456, 7600
EX = 108800
MX = EX
K2_LDS = EX + 32768

def rng(b, n): return f"v[{b}:{b+n-1}]"

def gen_k2(a, prof=False, slow=True):
    a.raw(".kernel_start")
    a("s_cmp_ge_u32 s2, 256")
    a("s_cbranch_scc1 K2_END")
    a("s_load_dwordx2 s[44:45], s[0:1], 112")
    a("s_load_dwordx2 s[48:49], s[0:1], 40")
    a("s_load_dwordx2 s[52:53], s[0:1], 96")
    if prof: a("s_memtime s[80:81]")
    a("v_lshrrev_b32 v1, 6, v0")
    a("v_and_b32 v0, 63, v0")
    a("v_readfirstlane_b32 s3, v1")
    a("s_and_b32 s4, s2, 7")
    a("s_lshr_b32 s5, s2, 3")
    a("s_lshl_b32 s8, s4, 5")
    a("s_add_u32 s8, s8, s5")
    a("s_mov_b32 s46, 0x%x" % WS_SIZE)
    a("s_mov_b32 s47, 0x00020000")
    a("s_mov_b32 s50, 0x200000")
    a("s_mov_b32 s51, 0x00020000")
    a("s_mov_b32 s54, 0x400000")
    a("s_mov_b32 s55, 0x00020000")
    a("v_lshlrev_b32 v1, 4, v0")
    a("s_cmp_ge_u32 s3, 8")
    a("s_cbranch_scc1 K2_H")
    K, V, S, O, Q = 8, 40, [104, 120], 136, 152
    a("s_lshl_b32 s10, s8, 13")
    a("s_lshl_b32 s11, s3, 10")
    a("s_add_u32 s12, s10, s11")
    a(f"s_add_u32 m0, s11, {QL}")
    a("s_lshl_b32 s13, s3, 13")
    a(f"s_add_u32 s14, s13, 0x{KF:x}")
    a(f"s_add_u32 s15, s13, 0x{KF+4096:x}")
    a(f"s_add_u32 s16, s13, 0x{VF:x}")
    a(f"s_add_u32 s17, s13, 0x{VF+4096:x}")
    a("v_and_b32 v2, 15, v0")
    a("v_lshlrev_b32 v2, 4, v2")
    a("v_lshrrev_b32 v3, 5, v0")
    a("v_lshl_add_u32 v2, v3, 8, v2")
    a("s_mov_b32 s18, 0x0000ffff")
    a("s_mov_b32 s19, 0x0000ffff")
    a("s_waitcnt lgkmcnt(0)")
    a("buffer_load_dwordx4 v1, s[44:47], s12 offen lds")
    a(f"buffer_load_dwordx4 {rng(Q,4)}, v1, s[44:47], s10 offen")
    def ldk(i): a(f"buffer_load_dwordx4 {rng(K+4*i,4)}, v1, s[44:47], s{14 + i//4} offen offset:{1024*(i%4)}")
    def ldv(i):
        for r in range(8): a(f"v_mov_b32 v{V+8*i+r}, 0x3f803f80")
        a("s_mov_b64 exec, s[18:19]")
        for m in range(2):
            a(f"buffer_load_dwordx4 {rng(V+8*i+4*m,4)}, v2, s[44:47], s{16 + i//4} offen offset:{1024*(i%4)+512*m}")
        a("s_mov_b64 exec, -1")
    ldk(0)
    for i in range(8):
        if i < 7: ldk(i + 1)
        ldv(i)
    a("s_mul_i32 s20, s3, 3072")
    a(f"s_add_u32 s20, s20, {PB1}")
    a("v_add_u32 v3, s20, v1")
    a(f"v_add_u32 v4, {QL+1024}, v1")
    a("s_mov_b32 s21, 8")
    a("s_waitcnt vmcnt(23)")
    if prof: a("s_memtime s[82:83]")
    a(f"v_mfma_f32_32x32x16_bf16 {rng(S[0],16)}, {rng(K,4)}, {rng(Q,4)}, 0")
    a("s_nop 7")
    a.label("K2_A_LOOP")
    for i in range(8):
        c, p = S[i % 2], S[(i + 1) % 2]
        ex = lambda j: a(f"v_exp_f32 v{c+j}, v{c+j}")
        cv = lambda j: a(f"v_cvt_pk_bf16_f32 v{c + (j if j < 4 else j + 4)}, v{c+2*j}, v{c+2*j+1}")
        a(f"s_waitcnt vmcnt({max(20 - 3*i, 0) if i < 7 else 0})")
        ex(0); ex(1)
        a(f"v_mfma_f32_32x32x16_bf16 {rng(O,16)}, {rng(V+8*((i-1)%8)+4,4)}, {rng(p+8,4)}, {rng(O,16)}")
        for j in range(2, 6): ex(j)
        if i == 7: a("s_waitcnt lgkmcnt(0)")
        a(f"v_mfma_f32_32x32x16_bf16 {rng(p,16)}, {rng(K+4*((i+1)%8),4)}, {rng(Q,4)}, 0")
        if i == 6:
            a(f"ds_read_b128 {rng(Q,4)}, v4")
            a("v_add_u32 v4, 1024, v4")
        ex(6); ex(7)
        for j in range(4): cv(j)
        ex(8); ex(9)
        if i == 0:
            a(f"ds_write_b128 v3, {rng(O,4)}")
            a(f"ds_write_b128 v3, {rng(O+4,4)} offset:1024")
            a(f"ds_write_b32 v3, v{O+8} offset:2048")
        if i == 1:
            a("s_waitcnt lgkmcnt(0)")
            a("s_barrier")
        a(f"v_mfma_f32_32x32x16_bf16 {rng(O,16)}, {rng(V+8*i,4)}, {rng(c,4)}, {'0' if i == 0 else rng(O,16)}")
        if i == 0: a("v_xor_b32 v3, 0x8000, v3")
        for j in range(10, 16): ex(j)
        if i == 7: a("s_sub_u32 s21, s21, 1")
        for j in range(4, 8): cv(j)
    a("s_cbranch_scc0 K2_A_CHK")
    a.items.pop()
    a("s_cmp_lg_u32 s21, 0")
    a("s_cbranch_scc1 K2_A_LOOP")
    if prof: a("s_memtime s[84:85]")
    a(f"v_mfma_f32_32x32x16_bf16 {rng(O,16)}, {rng(V+8*7+4,4)}, {rng(S[1]+8,4)}, {rng(O,16)}")
    a(f"ds_write_b128 v3, {rng(O,4)}")
    a(f"ds_write_b128 v3, {rng(O+4,4)} offset:1024")
    a(f"ds_write_b32 v3, v{O+8} offset:2048")
    a("s_waitcnt lgkmcnt(0)")
    a("s_barrier")
    a(f"v_mov_b32 v5, {FL}")
    a("s_barrier")
    a("ds_read_b32 v5, v5")
    a("s_waitcnt lgkmcnt(0)")
    a("v_readfirstlane_b32 s22, v5")
    a("s_cmp_eq_u32 s22, 0")
    a("s_cbranch_scc1 K2_A_DONE")
    if slow:
        NEG = "0xff800000"
        MXR = 156
        T = S[1]
        a(f"v_add_u32 v4, {QL}, v1")
        a("s_lshl_b32 s23, s3, 8")
        a(f"s_add_u32 s23, s23, {MX}")
        a("v_lshlrev_b32 v6, 2, v0")
        a("v_add_u32 v6, s23, v6")
        a("s_mov_b32 s21, 8")
        a.label("K2_S1")
        a(f"ds_read_b128 {rng(Q,4)}, v4")
        a("v_add_u32 v4, 1024, v4")
        a(f"v_mov_b32 v{MXR}, {NEG}")
        a("s_waitcnt lgkmcnt(0)")
        for i in range(8):
            a(f"v_mfma_f32_32x32x16_bf16 {rng(S[0],16)}, {rng(K+4*i,4)}, {rng(Q,4)}, 0")
            for j in range(8):
                a(f"v_max3_f32 v{MXR}, v{S[0]+2*j}, v{S[0]+2*j+1}, v{MXR}")
        a(f"ds_write_b32 v6, v{MXR}")
        a("v_add_u32 v6, 2048, v6")
        a("s_sub_u32 s21, s21, 1")
        a("s_cmp_lg_u32 s21, 0")
        a("s_cbranch_scc1 K2_S1")
        a("s_waitcnt lgkmcnt(0)")
        a("s_barrier")
        a(f"v_add_u32 v4, {QL}, v1")
        a("v_and_b32 v6, 31, v0")
        a("v_lshlrev_b32 v6, 2, v6")
        a(f"v_add_u32 v6, {MX}, v6")
        a("s_mul_i32 s20, s3, 3072")
        a("v_add_u32 v3, s20, v1")
        a("s_mov_b32 s21, 8")
        a.label("K2_S2")
        a(f"ds_read_b128 {rng(Q,4)}, v4")
        a("v_add_u32 v4, 1024, v4")
        for j in range(8):
            a(f"ds_read2_b32 {rng(T+2*j,2)}, v6 offset0:{64*(j%4)} offset1:{64*(j%4)+32}")
            if j == 3: a("v_add_u32 v6, 1024, v6")
        a("v_add_u32 v6, 1024, v6")
        a(f"v_mov_b32 v{MXR}, {NEG}")
        a("s_waitcnt lgkmcnt(0)")
        for j in range(8):
            a(f"v_max3_f32 v{MXR}, v{T+2*j}, v{T+2*j+1}, v{MXR}")
        for i in range(8):
            c = S[0]
            a(f"v_mfma_f32_32x32x16_bf16 {rng(c,16)}, {rng(K+4*i,4)}, {rng(Q,4)}, 0")
            for j in range(16): a(f"v_sub_f32 v{T+j}, v{c+j}, v{MXR}")
            for j in range(16): a(f"v_exp_f32 v{T+j}, v{T+j}")
            for j in range(8): a(f"v_cvt_pk_bf16_f32 v{T+j}, v{T+2*j}, v{T+2*j+1}")
            a(f"v_mfma_f32_32x32x16_bf16 {rng(O,16)}, {rng(V+8*i,4)}, {rng(T,4)}, {'0' if i == 0 else rng(O,16)}")
            a(f"v_mfma_f32_32x32x16_bf16 {rng(O,16)}, {rng(V+8*i+4,4)}, {rng(T+4,4)}, {rng(O,16)}")
        a(f"ds_write_b128 v3, {rng(O,4)}")
        a(f"ds_write_b128 v3, {rng(O+4,4)} offset:1024")
        a(f"ds_write_b32 v3, v{O+8} offset:2048")
        a("v_xor_b32 v3, 0x8000, v3")
        a("s_waitcnt lgkmcnt(0)")
        a("s_barrier")
        a("s_sub_u32 s21, s21, 1")
        a("s_cmp_lg_u32 s21, 0")
        a("s_cbranch_scc1 K2_S2")
        a("s_barrier")
    a.label("K2_A_DONE")
    if prof: prof_dump(a, 1, 12, "s3")
    a("s_endpgm")

    a.label("K2_H")
    a("s_setprio 3")
    OA, CA, WF, CF = 8, 40, 72, 136
    vPB, vWO, vOW, vOR, vA, vA2, vB, vCK = 0, 1, 2, 3, 4, 5, 6, 7
    L = CF
    a(f"v_mov_b32 v{L}, v0")
    a("s_sub_u32 s9, s3, 8")
    a("s_lshr_b32 s10, s9, 1")
    a("s_and_b32 s11, s9, 1")
    for r in range(4): a(f"v_mov_b32 v{CF+4+r}, 0")
    a(f"s_mul_i32 s12, s10, {KBC}")
    a(f"s_add_u32 s12, s12, {KB}")
    a("s_mul_i32 s13, s11, 432")
    a("s_add_u32 s13, s13, s12")
    a(f"v_add_u32 v{CF+1}, s13, v1")
    a(f"ds_write_b128 v{CF+1}, {rng(CF+4,4)}")
    a(f"ds_write_b128 v{CF+1}, {rng(CF+4,4)} offset:1024")
    a(f"s_mul_i32 s13, s9, {2*UCS}")
    a(f"s_add_u32 s13, s13, {UC}")
    a(f"v_bfe_u32 v{CF+1}, v{L}, 4, 1")
    a(f"v_mul_u32_u24 v{CF+1}, {UCS}, v{CF+1}")
    a(f"v_and_b32 v{CF+2}, 15, v{L}")
    a(f"v_lshl_add_u32 v{CF+1}, v{CF+2}, 2, v{CF+1}")
    a(f"v_add_u32 v{CF+1}, s13, v{CF+1}")
    a(f"ds_write_b32 v{CF+1}, v{CF+4}")
    a("s_lshl_b32 s13, s10, 10")
    a("s_lshl_b32 s14, s11, 3")
    a("s_add_u32 s13, s13, s14")
    a(f"v_add_u32 v{vPB}, s13, v1")
    a(f"v_bfe_u32 v{CF+1}, v{L}, 3, 2")
    a(f"v_lshlrev_b32 v{CF+1}, 8, v{CF+1}")
    a(f"v_and_b32 v{CF+2}, 7, v{L}")
    a(f"v_lshl_add_u32 v{CF+1}, v{CF+2}, 4, v{CF+1}")
    a(f"v_lshrrev_b32 v{CF+3}, 5, v{L}")
    a(f"v_lshl_add_u32 v{CF+1}, v{CF+3}, 3, v{CF+1}")
    a("s_lshl_b32 s13, s10, 7")
    a("s_lshl_b32 s14, s11, 2")
    a("s_add_u32 s13, s13, s14")
    a(f"s_add_u32 s13, s13, {OB}")
    a(f"v_add_u32 v{vOW}, s13, v{CF+1}")
    a(f"v_lshrrev_b32 v{CF+1}, 4, v{L}")
    a(f"v_lshlrev_b32 v{CF+1}, 7, v{CF+1}")
    a(f"v_lshl_add_u32 v{CF+1}, v{CF+2}, 4, v{CF+1}")
    a(f"v_add_u32 v{vOR}, {OB}, v{CF+1}")
    a(f"v_and_b32 v{CF+1}, 3, v{L}")
    a(f"v_mul_u32_u24 v{CF+1}, {UCS}, v{CF+1}")
    a(f"v_bfe_u32 v{CF+2}, v{L}, 2, 3")
    a(f"v_lshl_add_u32 v{CF+1}, v{CF+2}, 3, v{CF+1}")
    a(f"v_lshl_add_u32 v{CF+1}, v{CF+3}, 4, v{CF+1}")
    a(f"s_mul_i32 s13, s10, {UCC}")
    a("s_lshl_b32 s14, s11, 10")
    a("s_add_u32 s13, s13, s14")
    a(f"s_add_u32 s13, s13, {UC}")
    a(f"v_add_u32 v{vA}, s13, v{CF+1}")
    a(f"v_add_u32 v{vA2}, 2048, v{vA}")
    a(f"v_and_b32 v{CF+1}, 31, v{L}")
    a(f"v_mul_u32_u24 v{CF+1}, 80, v{CF+1}")
    a(f"v_lshl_add_u32 v{CF+1}, v{CF+3}, 4, v{CF+1}")
    a("s_mul_i32 s13, s11, 1280")
    a("s_sub_u32 s13, s12, s13")
    a(f"s_add_u32 s13, s13, {16*80}")
    a(f"v_add_u32 v{vB}, s13, v{CF+1}")
    a(f"v_mov_b32 v{vCK}, 0")
    a("s_mul_i32 s13, s11, 192")
    a(f"v_add_u32 v{CF+1}, s13, v{L}")
    for j in range(3):
        d = CF + 8 + j
        if j: a(f"v_add_u32 v{CF+1}, 64, v{CF+1}")
        a(f"v_mul_u32_u24 v{CF+2}, 52429, v{CF+1}")
        a(f"v_lshrrev_b32 v{CF+2}, 18, v{CF+2}")
        a(f"v_mul_u32_u24 v{CF+3}, 5, v{CF+2}")
        a(f"v_sub_u32 v{CF+3}, v{CF+1}, v{CF+3}")
        a(f"v_min_u32 v{CF+3}, 3, v{CF+3}")
        a(f"v_lshlrev_b32 v{CF+3}, 4, v{CF+3}")
        a(f"v_lshl_add_u32 v{d}, v{CF+2}, 6, v{CF+3}")
    a("s_lshl_b32 s13, s8, 1")
    a("s_add_u32 s13, s13, s10")
    a("s_lshl_b32 s13, s13, 12")
    a(f"s_add_u32 s13, s13, 0x{KG:x}")
    a("s_mul_i32 s14, s11, 3072")
    a("s_add_u32 s14, s14, s12")
    a("s_add_u32 s14, s14, 2480")
    a("s_lshl_b32 s15, s9, 19")
    a("s_lshl_b32 s16, s8, 2")
    a("s_add_u32 s15, s15, s16")
    a(f"v_lshlrev_b32 v{CF+1}, 13, v{L}")
    a(f"v_add_u32 v{CF+1}, s15, v{CF+1}")
    a(f"v_subrev_u32 v{CF+2}, 1024, v{CF+1}")
    a("s_lshl_b32 s24, s9, 14")
    a(f"s_add_u32 s24, s24, 0x{WOF:x}")
    a("s_mov_b32 s30, 6")
    a("s_mov_b32 s31, 0")
    a("s_waitcnt lgkmcnt(0)")
    a("s_barrier")
    for j in range(3):
        if j == 2:
            a("s_cmp_eq_u32 s11, 1")
            a("s_cbranch_scc1 K2_H_NODMA")
        a(f"s_add_u32 m0, s14, {1024*j}")
        a(f"buffer_load_dwordx4 v{CF+8+j}, s[44:47], s13 offen lds")
    a.label("K2_H_NODMA")
    def wo_offs():
        a("s_add_u32 s25, s24, 4096")
        a("s_add_u32 s26, s24, 8192")
        a("s_add_u32 s27, s24, 12288")
    def wo_load(f):
        a(f"buffer_load_dwordx4 {rng(WF+4*f,4)}, v{vWO}, s[44:47], s{24 + f//4} offen offset:{1024*(f%4)}")
    wo_offs()
    for f in range(16): wo_load(f)
    G = CA
    a("s_mov_b32 s16, 4096")
    a(f"buffer_load_dword v{G}, v{CF+2}, s[48:51], 0 offen")
    for j in range(8):
        a(f"buffer_load_dword v{G+1+j}, v{CF+1}, s[48:51], {'0' if j < 4 else 's16'} offen offset:{1024*(j%4)}")
    a.label("K2_H_RESTART")
    for r in range(32): a(f"v_mov_b32 v{OA+r}, 0")
    def red_reads():
        for j in range(4):
            a(f"ds_read2st64_b64 {rng(CF+4*j,4)}, v{vPB} offset0:{12*j} offset1:{12*j+6}")
        a(f"v_and_b32 v{CF+24}, 0x83f0, v{vPB}")
        for j in range(4):
            a(f"ds_read2st64_b32 {rng(CF+16+2*j,2)}, v{CF+24} offset0:{24*j+8} offset1:{24*j+20}")
    def red_math():
        for j in range(4):
            a(f"v_add_f32 v{CF+16+j*2}, v{CF+16+j*2}, v{CF+17+j*2}")
        for j in range(4):
            a(f"v_add_f32 v{CF+4*j}, v{CF+4*j}, v{CF+4*j+2}")
            a(f"v_add_f32 v{CF+4*j+1}, v{CF+4*j+1}, v{CF+4*j+3}")
        a(f"v_add_f32 v{CF+16}, v{CF+16}, v{CF+18}")
        a(f"v_add_f32 v{CF+20}, v{CF+20}, v{CF+22}")
        for j in (0, 8):
            a(f"v_add_f32 v{CF+j}, v{CF+j}, v{CF+j+4}")
            a(f"v_add_f32 v{CF+j+1}, v{CF+j+1}, v{CF+j+5}")
        a(f"v_add_f32 v{CF+16}, v{CF+16}, v{CF+20}")
        a(f"v_rcp_f32 v{CF+17}, v{CF+16}")
        a(f"v_add_f32 v{CF}, v{CF}, v{CF+8}")
        a(f"v_add_f32 v{CF+1}, v{CF+1}, v{CF+9}")
        a(f"v_subrev_u32 v{CF+16}, 0x1f800000, v{CF+16}")
        a(f"v_mul_f32 v{CF}, v{CF}, v{CF+17}")
        a(f"v_mul_f32 v{CF+1}, v{CF+1}, v{CF+17}")
        a(f"v_max_u32 v{vCK}, v{vCK}, v{CF+16}")
        a(f"v_cvt_pk_bf16_f32 v{CF}, v{CF}, v{CF+1}")
        a(f"ds_write_b32 v{vOW}, v{CF}")
        a(f"v_xor_b32 v{vPB}, 0x8000, v{vPB}")
        a(f"v_xor_b32 v{vOW}, 1024, v{vOW}")
    def op_reads():
        a(f"ds_read_b128 {rng(CF+24,4)}, v{vOR}")
        a(f"ds_read_b128 {rng(CF+28,4)}, v{vOR} offset:512")
        a(f"v_xor_b32 v{vOR}, 1024, v{vOR}")
    def op_mm(reload):
        if reload:
            a("s_add_u32 s24, s24, 0x10000")
            wo_offs()
        for f in range(16):
            ks, mt = f // 8, f % 8
            a(f"v_mfma_f32_16x16x32_bf16 {rng(OA+4*mt,4)}, {rng(WF+4*f,4)}, {rng(CF+24+4*ks,4)}, {rng(OA+4*mt,4)}")
            if reload: wo_load(f)
    a("s_barrier")
    red_reads()
    a("s_waitcnt lgkmcnt(0)")
    red_math()
    a("s_mov_b32 s21, 1")
    a.label("K2_H_LOOP")
    a("s_waitcnt lgkmcnt(0)")
    a("s_barrier")
    red_reads()
    op_reads()
    a("s_waitcnt lgkmcnt(2)")
    red_math()
    a("s_cmp_eq_u32 s21, s30")
    a("s_cbranch_scc1 K2_H_W8")
    a("s_waitcnt vmcnt(0)")
    a.label("K2_H_W8")
    a("s_waitcnt vmcnt(8) lgkmcnt(1)")
    op_mm(True)
    a("s_cmp_lg_u32 s31, 0")
    a("s_cbranch_scc1 K2_H_NEXT")
    for k in range(1, 6):
        a(f"s_cmp_eq_u32 s21, {k}")
        a(f"s_cbranch_scc1 K2_H_X{k}")
    a.label("K2_H_NEXT")
    a("s_add_u32 s21, s21, 1")
    a("s_cmp_lt_u32 s21, 8")
    a("s_cbranch_scc1 K2_H_LOOP")
    a(f"v_cmp_le_u32 vcc, 0x40000000, v{vCK}")
    a("s_cmp_lg_u64 vcc, 0")
    a("s_cselect_b32 s22, 1, 0")
    a("s_andn2_b32 s22, s22, s31")
    a(f"v_mov_b32 v{CF}, s22")
    a(f"v_mov_b32 v{CF+1}, {FL}")
    a(f"ds_write_b32 v{CF+1}, v{CF}")
    a("s_waitcnt lgkmcnt(0)")
    if prof: a("s_memtime s[84:85]")
    a("s_barrier")
    a("s_cmp_lg_u32 s22, 0")
    a("s_cbranch_scc1 K2_H_SLOW")
    op_reads()
    a(f"v_mbcnt_lo_u32_b32 v{CF}, -1, 0")
    a(f"v_mbcnt_hi_u32_b32 v{CF}, -1, v{CF}")
    a(f"v_and_b32 v{CF+1}, 15, v{CF}")
    a(f"v_lshlrev_b32 v{CF+1}, 11, v{CF+1}")
    a(f"v_lshrrev_b32 v{CF}, 4, v{CF}")
    a(f"v_lshl_add_u32 v{CF}, v{CF}, 6, v{CF+1}")
    a("s_lshl_b32 s13, s8, 14")
    a("s_lshl_b32 s14, s9, 8")
    a("s_add_u32 s13, s13, s14")
    a("s_mov_b32 s14, 0x00ff00ff")
    a("s_mov_b32 s15, 0x00ff00ff")
    a("s_waitcnt vmcnt(0) lgkmcnt(0)")
    op_mm(False)
    for j in range(16):
        a(f"v_cvt_pk_bf16_f32 v{CA+j}, v{OA+2*j}, v{OA+2*j+1}")
    a("s_mov_b64 exec, s[14:15]")
    for j in range(4):
        a(f"buffer_store_dwordx4 {rng(CA+4*j,4)}, v{CF}, s[52:55], s13 offen offset:{16*j}")
    if prof: prof_dump(a, 1, 12, "s3")
    a("s_endpgm")
    a.label("K2_H_SLOW")
    a("s_mov_b32 s31, 1")
    a("s_mov_b32 s30, 99")
    a("s_waitcnt vmcnt(0)")
    a("s_lshl_b32 s24, s9, 14")
    a(f"s_add_u32 s24, s24, 0x{WOF:x}")
    wo_offs()
    for f in range(16): wo_load(f)
    a(f"v_xor_b32 v{vOR}, 1024, v{vOR}")
    a("s_barrier")
    a("s_branch K2_H_RESTART")
    a.label("K2_H_X1")
    a("s_mov_b32 s16, 0x05040100")
    a("s_mov_b32 s17, 0x07060302")
    a("s_lshl_b32 s13, s9, 10")
    a(f"s_add_u32 s13, s13, {UC + 56}")
    a(f"v_add_u32 v{CF+16}, s13, v{vWO}")
    for ch in range(2):
        sel = f"s{16+ch}"
        for j in range(4):
            a(f"v_perm_b32 v{CF+8*ch+j}, v{G+2*j+1}, v{G+2*j}, {sel}")
            a(f"v_perm_b32 v{CF+8*ch+4+j}, v{G+2*j+2}, v{G+2*j+1}, {sel}")
    for ch in range(2):
        for par in range(2):
            d = CF + 8 * ch + 4 * par
            a(f"ds_write_b128 v{CF+16}, {rng(d,4)} offset:{ch*UCC + (2+par)*UCS}")
            a(f"v_add_u32 v{CF+17}, {ch*UCC + par*UCS + 4}, v{CF+16}")
            a(f"ds_write2_b32 v{CF+17}, v{d}, v{d+1} offset1:1")
            a(f"ds_write2_b32 v{CF+17}, v{d+2}, v{d+3} offset0:2 offset1:3")
    a("s_branch K2_H_NEXT")
    def crd(g, m):
        f = CF + 16 * m
        a(f"ds_read2_b64 {rng(f,4)}, v{vA} offset0:{8*g+4*m} offset1:{8*g+4*m+1}")
        a(f"ds_read_b128 {rng(f+4,4)}, v{vB} offset:{(15-g)*80 + 32*m}")
        a(f"ds_read_b128 {rng(f+8,4)}, v{vB} offset:{(15-g)*80 + 32*m + 2560}")
        a(f"ds_read2_b64 {rng(f+12,4)}, v{vA2} offset0:{8*g+4*m} offset1:{8*g+4*m+1}")
    def cmm(g, m):
        f = CF + 16 * m
        first = (g == 0 and m == 0)
        a0, a1 = rng(CA, 16), rng(CA + 16, 16)
        a(f"v_mfma_f32_32x32x16_bf16 {a0}, {rng(f,4)}, {rng(f+4,4)}, {'0' if first else a0}")
        a(f"v_mfma_f32_32x32x16_bf16 {a1}, {rng(f,4)}, {rng(f+8,4)}, {'0' if first else a1}")
        a(f"v_mfma_f32_32x32x16_bf16 {a1}, {rng(f+12,4)}, {rng(f+4,4)}, {a1}")
    for k, (g0, g1) in zip((2, 3, 4), ((0, 6), (6, 11), (11, 16))):
        a.label(f"K2_H_X{k}")
        seq = [(g, m) for g in range(g0, g1) for m in range(2)]
        crd(*seq[0]); crd(*seq[1])
        for n, gm in enumerate(seq):
            a(f"s_waitcnt lgkmcnt({4 if n + 1 < len(seq) else 0})")
            cmm(*gm)
            if n + 2 < len(seq): crd(*seq[n + 2])
        if k == 4:
            a("s_lshl_b32 s13, s9, 13")
            a(f"s_add_u32 s13, s13, {EX}")
            a(f"v_add_u32 v{CF}, s13, v{vWO}")
            for j in range(8):
                a(f"ds_write_b128 v{CF}, {rng(CA+4*j,4)} offset:{1024*j}")
        a("s_branch K2_H_NEXT")
    a.label("K2_H_X5")
    a("s_lshl_b32 s13, s9, 11")
    a(f"s_add_u32 s13, s13, {EX}")
    a(f"v_add_u32 v{CF}, s13, v{vWO}")
    for src in range(4):
        for h in range(2):
            a(f"ds_read_b128 {rng(CA+8*src+4*h,4)}, v{CF} offset:{8192*src + 1024*h}")
    a(f"v_lshrrev_b32 v{CF+1}, 4, v{vWO}")
    a(f"v_and_b32 v{CF+2}, 31, v{CF+1}")
    a(f"v_lshlrev_b32 v{CF+2}, 16, v{CF+2}")
    a(f"v_lshrrev_b32 v{CF+1}, 5, v{CF+1}")
    a(f"v_lshl_add_u32 v{CF+1}, v{CF+1}, 13, v{CF+2}")
    a("s_lshl_b32 s13, s10, 21")
    a("s_lshl_b32 s14, s11, 15")
    a("s_add_u32 s13, s13, s14")
    a("s_lshl_b32 s14, s8, 2")
    a("s_add_u32 s13, s13, s14")
    a("s_add_u32 s13, s13, 1024")
    a("s_waitcnt lgkmcnt(0)")
    for j in range(8):
        a(f"v_add_f32 v{CA+j}, v{CA+j}, v{CA+8+j}")
        a(f"v_add_f32 v{CA+16+j}, v{CA+16+j}, v{CA+24+j}")
        a(f"v_cvt_pk_bf16_f32 v{CA+j}, v{CA+j}, v{CA+16+j}")
    for j in range(8):
        if j % 2 == 0 and j:
            a(f"s_add_u32 s13, s13, {4096 if j != 4 else 4096 + 4*2048}")
        a(f"buffer_store_dword v{CA+j}, v{CF+1}, s[52:55], s13 offen offset:{2048*(j%2)}")
    a("s_branch K2_H_NEXT")
    a.label("K2_END")
    a("s_endpgm")
    return 168
```

```python
import sys, os
sys.path.insert(0, os.path.dirname(__file__))
from asmb import Asm
from common import *
import k1, k2
NAME = "concat_heads__grouped_kv_mqa__ssm_conv_s4d__prompt"
def build(prof=False):
    a = Asm()
    a.raw(f"; @launch kernel={NAME}_kernel grid=(256,1,1) block=(512,1,1) lds={k1.K1_LDS}")
    a.raw(f"; @launch kernel=attnconv_kernel grid=(256,1,1) block=(768,1,1) lds={k2.K2_LDS}")
    a.raw('.amdgcn_target "amdgcn-amd-amdhsa--gfx950"')
    a.raw(".text")
    regs = {}
    for name, fn in ((NAME + "_kernel", k1.gen_k1), ("attnconv_kernel", k2.gen_k2)):
        a.raw(f".globl {name}\n.p2align 8\n.type {name},@function\n{name}:")
        regs[name] = fn(a, prof)
    n = a.pad()
    a.raw('.section .rodata,"a"')
    for name, nv in regs.items():
        a.raw(f""".p2align 6
.amdhsa_kernel {name}
  .amdhsa_next_free_vgpr {nv}
  .amdhsa_next_free_sgpr 102
  .amdhsa_accum_offset {(nv + 3) // 4 * 4}
  .amdhsa_group_segment_fixed_size 0
  .amdhsa_kernarg_size 120
  .amdhsa_user_sgpr_count 2
  .amdhsa_user_sgpr_kernarg_segment_ptr 1
  .amdhsa_system_sgpr_workgroup_id_x 1
.end_amdhsa_kernel""")
    return a.text(), n
if __name__ == "__main__":
    prof = "--prof" in sys.argv
    out = [x for x in sys.argv[1:] if not x.startswith("--")]
    out = out[0] if out else f"cdna_kernels/{NAME}.s"
    t, n = build(prof)
    open(out, "w").write(t)
    print("wrote", out, len(t), "bytes,", n, "nops inserted")
```

```python
import sys, subprocess, os, struct, ctypes
import numpy as np
sys.path.insert(0, 'cdna_kernels')
from cdna_launch import (with_harness_metadata, AsmKernel, DeviceBuffer, pack_ptr_kernargs, _hip, _check)

TEMPLATE = """; @launch grid=({grid},1,1) block=({block},1,1) lds={lds}
.amdgcn_target "amdgcn-amd-amdhsa--gfx950"
.text
.globl mb_kernel
.p2align 8
.type mb_kernel,@function
mb_kernel:
    s_load_dwordx2 s[4:5], s[0:1], 0
    s_load_dwordx2 s[6:7], s[0:1], 8
    s_waitcnt lgkmcnt(0)
    s_mov_b32 s8, s4
    s_mov_b32 s9, s5
    s_mov_b32 s10, 0x100000
    s_mov_b32 s11, 0x00020000
    s_mov_b32 s12, s6
    s_mov_b32 s13, s7
    s_mov_b32 s14, 0x1000000
    s_mov_b32 s15, 0x00020000
    v_lshrrev_b32 v1, 6, v0
    s_nop 1
    v_readfirstlane_b32 s20, v1
{init}
    s_barrier
    s_memtime s[16:17]
    s_waitcnt lgkmcnt(0)
    s_mov_b32 s21, {iters}
L_loop:
{body}
    s_sub_u32 s21, s21, 1
    s_cmp_lg_u32 s21, 0
    s_cbranch_scc1 L_loop
{tail}
    s_memtime s[18:19]
    s_waitcnt lgkmcnt(0)
    s_sub_u32 s18, s18, s16
    s_subb_u32 s19, s19, s17
    v_mov_b32 v2, s18
    s_mul_i32 s22, s2, {waves}
    s_add_u32 s22, s22, s20
    s_lshl_b32 s22, s22, 2
    v_mov_b32 v3, s22
    v_and_b32 v4, 63, v0
    v_cmp_eq_u32 vcc, 0, v4
    s_and_saveexec_b64 s[24:25], vcc
    buffer_store_dword v2, v3, s[8:11], 0 offen
    s_waitcnt vmcnt(0)
    s_endpgm
.section .rodata,"a"
.p2align 6
.amdhsa_kernel mb_kernel
  .amdhsa_next_free_vgpr {vgpr}
  .amdhsa_next_free_sgpr 102
  .amdhsa_accum_offset {accum}
  .amdhsa_group_segment_fixed_size 0
  .amdhsa_kernarg_size 16
  .amdhsa_user_sgpr_count 2
  .amdhsa_user_sgpr_kernarg_segment_ptr 1
  .amdhsa_system_sgpr_workgroup_id_x 1
.end_amdhsa_kernel
"""

_out = None
_in = None
def run(name, body, init="", tail="", iters=100, grid=1, block=256, lds=0, vgpr=128, per=1, reps=3):
    global _out, _in
    waves = block // 64
    src = TEMPLATE.format(grid=grid, block=block, lds=lds, init=init, body=body, tail=tail, iters=iters,
                          waves=waves, vgpr=vgpr, accum=min(256, (vgpr + 3) // 4 * 4))
    asm = with_harness_metadata(src, "mb_kernel", 2)
    p = f"mb_{name}.s"
    open(p, "w").write(asm)
    co = f"mb_{name}.co"
    r = subprocess.run(["clang", "-x", "assembler", "-target", "amdgcn-amd-amdhsa", "-mcpu=gfx950", p, "-o", co], capture_output=True, text=True)
    if r.returncode != 0:
        print(name, "ASM FAIL", r.stderr[:2000]); return None
    if not os.path.exists('/dev/kfd'):
        print(name, "assembled"); return None
    if _out is None:
        _out = DeviceBuffer(0x100000)
        _in = DeviceBuffer.from_numpy(np.random.rand(0x1000000 // 4).astype(np.float32))
    k = AsmKernel(co, "mb_kernel")
    res = []
    for _ in range(reps):
        k.launch((grid, 1, 1), (block, 1, 1), pack_ptr_kernargs([_out.ptr, _in.ptr]), lds)
        _check(_hip.hipDeviceSynchronize())
        o = _out.to_numpy(np.uint32, (grid * waves,))
        res.append(o)
    o = res[-1]
    if os.environ.get("MB_FIRST"): print("   first-rep: min=%d max=%d mean=%.1f" % (res[0].min(), res[0].max(), res[0].mean()))
    print(f"{name:40s} block={block} grid={grid}: cyc/iter min={o.min()/iters:9.2f} max={o.max()/iters:9.2f} mean={o.mean()/iters:9.2f}  per-unit(max)={o.max()/iters/per:7.3f}")
    k.unload()
    return o
```

```python
from mb import run
import numpy as np
import sys
sys.argv=["x"]
import importlib.util
src=open("mb21.py").read().split("for block in")[0]
exec(src)
for grid in (1, 64, 256):
  for iters in (5, 50):
    for block in (256, 512):
        n = 12 * (block // 256)
        kw = dict(block=block, per=n, iters=iters, lds=150000, vgpr=176, grid=grid)
        for nm in ("cur", "exp"):
            o = run(nm + f" it{iters}", body(orders[nm]), init, **kw)
            if o is not None and grid == 256:
                o = o.reshape(grid, -1).max(axis=1)
                print("    per xcd:", [int(np.median(o[x::8]) / iters / n) for x in range(8)])
```

```python
import sys, subprocess, os, ctypes, time
import numpy as np
sys.path.insert(0, 'cdna_kernels')
from cdna_launch import (with_harness_metadata, AsmKernel, DeviceBuffer, pack_ptr_kernargs, _hip, _check)
T = """; @launch grid=(256,1,1) block=({block},1,1) lds=150000
.amdgcn_target "amdgcn-amd-amdhsa--gfx950"
.text
.globl mb_kernel
.p2align 8
.type mb_kernel,@function
mb_kernel:
    s_load_dwordx2 s[8:9], s[0:1], 0
    s_load_dwordx2 s[12:13], s[0:1], 8
    s_mov_b32 s10, 0x100000
    s_mov_b32 s11, 0x00020000
    s_mov_b32 s14, 0x1000000
    s_mov_b32 s15, 0x00020000
    v_lshrrev_b32 v1, 6, v0
    v_lshlrev_b32 v2, 4, v0
    s_nop 1
    v_readfirstlane_b32 s20, v1
    s_lshl_b32 s23, s2, 16
    s_waitcnt lgkmcnt(0)
{init}
    s_waitcnt vmcnt(0)
    s_barrier
    s_memtime s[16:17]
    s_memrealtime s[26:27]
    s_waitcnt lgkmcnt(0)
    s_mov_b32 s21, {iters}
L_loop:
{body}
    s_sub_u32 s21, s21, 1
    s_cmp_lg_u32 s21, 0
    s_cbranch_scc1 L_loop
    s_memtime s[18:19]
    s_memrealtime s[28:29]
    s_waitcnt lgkmcnt(0)
    s_sub_u32 s18, s18, s16
    s_sub_u32 s28, s28, s26
    v_mov_b32 v2, s18
    v_mov_b32 v3, s28
    s_mul_i32 s22, s2, {waves}
    s_add_u32 s22, s22, s20
    s_lshl_b32 s22, s22, 3
    s_mov_b64 exec, 1
    buffer_store_dwordx2 v[2:3], off, s[8:11], s22
    s_waitcnt vmcnt(0)
    s_endpgm
.section .rodata,"a"
.p2align 6
.amdhsa_kernel mb_kernel
  .amdhsa_next_free_vgpr 168
  .amdhsa_next_free_sgpr 102
  .amdhsa_accum_offset 168
  .amdhsa_group_segment_fixed_size 0
  .amdhsa_kernarg_size 16
  .amdhsa_user_sgpr_count 2
  .amdhsa_user_sgpr_kernarg_segment_ptr 1
  .amdhsa_system_sgpr_workgroup_id_x 1
.end_amdhsa_kernel
"""
bufs = {}
def run(name, body, init, iters=5, block=512, per=12, reps=9):
    waves = block // 64
    src = T.format(block=block, init=init, body=body, iters=iters, waves=waves)
    open("pw.s", "w").write(with_harness_metadata(src, "mb_kernel", 2))
    r = subprocess.run(["clang", "-x", "assembler", "-target", "amdgcn-amd-amdhsa", "-mcpu=gfx950", "pw.s", "-o", "pw.co"], capture_output=True, text=True)
    if r.returncode: print(name, "ASM FAIL", r.stderr[:1500]); return
    if not os.path.exists('/dev/kfd'): print(name, "assembled"); return
    if not bufs:
        rs = np.random.RandomState(0)
        h = (rs.randn(0x800000) * 0.55).astype(np.float32)
        bufs["in"] = DeviceBuffer.from_numpy((h.view(np.uint32) >> 16).astype(np.uint16))
        bufs["out"] = DeviceBuffer(0x100000)
        bufs["big"] = DeviceBuffer(256 << 20)
    k = AsmKernel("pw.co", "mb_kernel")
    res = []
    for rep in range(reps):
        _check(_hip.hipMemset(ctypes.c_void_p(bufs["big"].ptr), rep, 256 << 20))
        k.launch((256, 1, 1), (block, 1, 1), pack_ptr_kernargs([bufs["out"].ptr, bufs["in"].ptr]), 150000)
        _check(_hip.hipDeviceSynchronize())
        o = bufs["out"].to_numpy(np.uint32, (256, waves, 2)).astype(np.float64).max(axis=1)
        res.append(o.mean(axis=0))
    m = np.median(np.array(res[1:]), axis=0)
    n = iters * per * (min(waves, 8) // 4)
    print(f"{name:28s} cyc/slot {m[0]/n:7.1f}  ns/slot {m[1]*10/n:6.1f}  GHz {m[0]/m[1]/10:.3f}")
    k.unload()
O, V, K, Q, S, IX = 8, 72, 96, 108, [124, 140], 156
def rng(b, n): return f"v[{b}:{b+n-1}]"
def mkinit(vmask="0x0000ffff"):
    l = [f"v_mov_b32 v{O+i}, 0" for i in range(64)]
    l += ["v_and_b32 v3, 27, v0", "v_cmp_eq_u32 vcc, 16, v3", "v_mov_b32 v4, 0x3f803f80", "v_cndmask_b32 v3, 0, v4, vcc"]
    l += [f"v_mov_b32 v{V+i}, v3" for i in range(24)]
    l += [f"v_mov_b32 v{IX}, 0xdddddddd", f"v_mov_b32 v{IX+5}, 0x3f803f80", f"v_mov_b32 v{IX+2}, 0x3f803f80", f"v_mov_b32 v{IX+3}, 0x3f803f80", f"v_mov_b32 v{IX+4}, 0x3f803f80"]
    for j in range(7):
        l += [f"buffer_load_dwordx4 {rng(K+4*j,4)}, v2, s[12:15], s23 offen", "s_add_u32 s23, s23, 8192"]
    l += ["s_lshl_b32 s23, s2, 16", "s_add_u32 s23, s23, 64", f"s_mov_b32 exec_lo, {vmask}", f"s_mov_b32 exec_hi, {vmask}"]
    for j in range(6):
        l += [f"buffer_load_dwordx4 {rng(V+4*j,4)}, v2, s[12:15], s23 offen", "s_add_u32 s23, s23, 8192"]
    l += ["s_mov_b64 exec, -1", "s_waitcnt vmcnt(0)"]
    for j in range(2):
        l += [f"v_mfma_f32_32x32x16_bf16 {rng(S[j],16)}, {rng(K+4*j,4)}, {rng(Q,4)}, 0"]
    l += ["s_nop 15", "s_nop 15"]
    return "\n".join("    " + x for x in l)
def body(order):
    out = []
    for n in range(12):
        c, p = S[n % 2], S[(n + 1) % 2]
        rt, ks = n % 4, (n // 4) % 3
        prt, pks = (n - 1) % 4, ((n - 1) // 4) % 3
        nrt, nks = (n + 1) % 4, ((n + 1) // 4) % 3
        for t in order.split():
            k, j = t[0], int(t[1:] or 0)
            if k == 'e': out.append(f"v_exp_f32 v{c+j}, v{c+j}")
            elif k == 'x': out.append(f"v_exp_f32 v{c+j}, v{K + (j + 5*n) % 28}")
            elif k == 'h': out.append(f"v_exp_f16 v{c+j}, v{K + (j + 5*n) % 28}")
            elif k == 'P': out.append(f"v_smfmac_f32_32x32x32_bf16 {rng(O+16*prt,16)}, {rng(V+8*pks+4,4)}, {rng(p+8,8)}, v{IX}")
            elif k == 'S': out.append(f"v_mfma_f32_32x32x16_bf16 {rng(p,16)}, {rng(K+4*nks,4)}, {rng(Q+4*nrt,4)}, 0")
            elif k == 'R': out.append(f"v_smfmac_f32_32x32x32_bf16 {rng(O+16*rt,16)}, {rng(V+8*ks,4)}, {rng(c,8)}, v{IX}")
            elif k == 's': out.append(f"v_mfma_f32_16x16x16_bf16 {rng(p+4*j,4)}, {rng(K+4*nks+2*(j%2),2)}, {rng(Q+4*nrt+2*(j//2),2)}, 0")
            elif k == 't': out.append(f"v_mfma_f32_16x16x32_bf16 {rng(p+4*j,4)}, {rng(K+4*((nks+j%2)%3),4)}, {rng(Q+4*((nrt+j//2)%4),4)}, 0")
            elif k == 'p': out.append(f"v_smfmac_f32_16x16x64_bf16 {rng(O+16*prt+4,4)}, {rng(V+8*pks,4)}, {rng(p+8,8)}, v{IX}")
            elif k == 'r': out.append(f"v_smfmac_f32_16x16x64_bf16 {rng(O+16*rt,4)}, {rng(V+8*ks,4)}, {rng(c,8)}, v{IX}")
            elif k == 'q': out.append(f"v_smfmac_f32_16x16x64_bf16 {rng(O+16*prt+12,4)}, {rng(IX+2,4)}, {rng(p+8,8)}, v{IX}")
            elif k == 'u': out.append(f"v_smfmac_f32_16x16x64_bf16 {rng(O+16*rt+8,4)}, {rng(IX+2,4)}, {rng(c,8)}, v{IX}")
            elif k == 'a': out.append(f"v_pk_add_f32 {rng(O+16*rt+8+2*(j%2),2)}, {rng(O+16*rt+8+2*(j%2),2)}, {rng(c+2*j,2)}")
            elif k == 'b': out.append(f"v_add_f32 v{O+16*rt+8+j%4}, v{O+16*rt+8+j%4}, v{c+j}")
            elif k == 'n': out.append(f"s_nop {j}")
    return "\n".join("    " + l for l in out)
if __name__ == "__main__":
    E = lambda a, b, c='e': " ".join(f"{c}{i}" for i in range(a, b))
    tests = {
     "cur": "e0 e1 P e2 e3 e4 S e5 e6 e7 e8 e9 e10 R e11 e12 e13 e14 e15",
     "exp": E(0, 16, 'x'),
     "exp16": E(0, 16, 'h'),
     "exp+S": "e0 e1 e2 e3 e4 S e5 e6 e7 e8 e9 e10 e11 e12 e13 e14 e15",
     "exp+PV": "x0 x1 P x2 x3 x4 x5 x6 x7 x8 x9 x10 R x11 x12 x13 x14 x15",
     "mfma only": "P S R",
    }
    i = mkinit()
    for nm, o in tests.items(): run(nm, body(o), i)
    i2 = mkinit("-1")
    t16 = {
     "s16 pv16": "e0 e1 p e2 e3 s0 e4 e5 s1 e6 e7 s2 e8 e9 s3 e10 e11 r e12 e13 e14 e15",
     "s16 pv16 sum16": "e0 e1 p e2 q e3 s0 e4 e5 s1 e6 e7 s2 e8 e9 s3 e10 e11 r e12 e13 u e14 e15",
     "s16 pv16 pk": "e0 e1 p e2 e3 s0 a0 e4 e5 s1 a1 e6 e7 s2 a2 e8 e9 s3 a3 e10 e11 r a4 e12 e13 a5 e14 e15 a6 a7",
     "exp+s16": "e0 e1 e2 e3 s0 e4 e5 s1 e6 e7 s2 e8 e9 s3 e10 e11 e12 e13 e14 e15",
     "exp+pv16": "x0 x1 p x2 x3 x4 x5 x6 x7 x8 x9 x10 r x11 x12 x13 x14 x15",
     "cur fullV": tests["cur"],
    }
    for nm, o in t16.items(): run(nm, body(o), i2)
    run("cur again", body(tests["cur"]), i)
    run("cur 1wave", body(tests["cur"]), i, block=256, iters=10)
```

```python
import pw
from pw import *
import sys
def body6(order, pl):
    out = []
    for n in range(12):
        c, p = S[n % 2], S[(n + 1) % 2]
        rt, ks = n % 4, (n // 4) % 3
        prt, pks = (n - 1) % 4, ((n - 1) // 4) % 3
        nrt, nks = (n + 1) % 4, ((n + 1) // 4) % 3
        for t in order.split():
            k, j = t[0], int(t[1:] or 0)
            if k == 'e': out.append(f"v_exp_f32 v{c+j}, v{c+j}")
            elif k == 'P': out.append(f"v_smfmac_f32_32x32x32_bf16 {rng(O+16*prt,16)}, {rng(V+8*pks+4,4)}, {rng(p+8,8)}, v{IX}")
            elif k == 'S': out.append(f"v_mfma_f32_32x32x16_bf16 {rng(p,16)}, {rng(K+4*nks,4)}, {rng(Q+4*nrt,4)}, 0")
            elif k == 'R': out.append(f"v_smfmac_f32_32x32x32_bf16 {rng(O+16*rt,16)}, {rng(V+8*ks,4)}, {rng(c,8)}, v{IX}")
            vs = V + 8 * ((ks + 2) % 3)
            for op in pl.get(f"{rt}{t}", ""):
                if op == "x": out.append("s_mov_b64 exec, s[40:41]")
                elif op == "y": out.append("s_mov_b64 exec, -1")
                elif op in "ab": out.append(f"buffer_load_dwordx4 {rng(vs+4*(op=='b'),4)}, v4, s[12:15], s42 offen offset:{1024+512*(op=='b')} sc1")
                elif op in "AB": out.append(f"buffer_load_dwordx4 {rng(vs+4*(op=='B'),4)}, v5, s[12:15], s42 offen offset:{1024+512*(op=='B')} sc1")
                elif op == "K": out.append(f"buffer_load_dwordx4 {rng(K+4*ks,4)}, v3, s[12:15], s42 offen sc1")
                elif op == "r": out += ["s_add_u32 s42, s42, 2048"]
                elif op == "q": out += ["s_and_b32 s42, s42, 0x7fff"]
                elif op == "w": out.append("s_waitcnt vmcnt(4)")
    return "\n".join("    " + l for l in out)
i = mkinit() + "\n" + "\n".join("    " + x for x in [
    "s_mov_b32 s40, 0xffff", "s_mov_b32 s41, 0xffff", "s_mov_b32 s42, 0",
    "v_and_b32 v3, 63, v0", "v_lshlrev_b32 v3, 4, v3", "s_and_b32 s43, s20, 3", "s_lshl_b32 s43, s43, 15",
    "v_and_b32 v4, 15, v0", "v_lshlrev_b32 v4, 4, v4", "v_and_b32 v5, 32, v0", "v_lshl_add_u32 v4, v5, 3, v4",
    "v_add_u32 v3, s43, v3", "v_add_u32 v4, s43, v4",
    "v_mov_b32 v5, 0x40000000", "v_and_b32 v6, 27, v0", "v_cmp_eq_u32 vcc, 16, v6", "v_mov_b32 v6, 0x20000", "v_cndmask_b32 v5, v5, v6, vcc",
    "v_cndmask_b32 v5, v5, v4, s[40:41]"] +
    sum([[f"buffer_load_dwordx4 v[160:163], v3, s[12:15], s42 offen", "s_add_u32 s42, s42, 1024"] for j in range(64)], []) + ["s_mov_b32 s42, 0"])
cur = "e0 e1 P e2 e3 e4 S e5 e6 e7 e8 e9 e10 R e11 e12 e13 e14 e15"
def P(s): return dict(x.split(":") for x in s.split())
tests = {
 "none": "",
 "now": "0P:xaby 1P:rq 2S:K 3P:w",
 "now nowait": "0P:xaby 1P:rq 2S:K",
 "K only": "1P:rq 2S:K",
 "A only S": "1P:rq 0S:A",
 "A only P": "1P:rq 0P:A",
 "A only R": "1P:rq 0R:A",
 "A only e7": "1P:rq 0e7:A",
 "0S 1S 2S": "0S:A 1S:B 1R:rq 2S:K 3P:w",
 "0P 0S 2S": "0P:A 0S:B 1P:rq 2S:K 3P:w",
 "0P 0R 2S": "0P:A 0R:B 1P:rq 2S:K 3P:w",
 "0P 1P 2S": "0P:A 1P:B 1R:rq 2S:K 3P:w",
 "0R 1R 2R": "0R:A 1R:B 2P:rq 2R:K 3P:w",
 "x P aby": "0e1:x 0P:aby 1P:rq 2S:K 3P:w",
 "xPay xRby": "0e1:x 0P:ay 0e10:x 0R:by 1P:rq 2S:K 3P:w",
 "xSay xSby": "0e4:x 0S:ay 1e4:x 1S:by 1R:rq 2S:K 3P:w",
 "Sxay Sxby": "0S:xay 1S:xby 1R:rq 2S:K 3P:w",
 "all at 2S": "2S:KAB 1R:rq 3P:w",
 "all at 2S m": "2S:Kxaby 1R:rq 3P:w",
 "all at 3P": "3P:KAB 1R:rq 2P:w",
 "all at 2R m": "2R:Kxaby 1R:rq 3P:w",
}
for nm, s in tests.items(): run(nm, body6(cur, P(s)), i, reps=7)
```
